```python
import torch

def _softmax(x, axis=-1):
    return torch.softmax(x, dim=axis)
def _gelu(x):
    return torch.nn.functional.gelu(x, approximate="tanh")
def _silu(x):
    return torch.nn.functional.silu(x)
def _sigmoid(x):
    return torch.sigmoid(x)
def _layernorm(x, axis=-1, eps=1e-5):
    m = x.mean(dim=axis, keepdim=True)
    v = x.var(dim=axis, keepdim=True, unbiased=False)
    return (x - m) / torch.sqrt(v + eps)
def _scatter_add(tgt, idx, src, axis=0):
    return tgt.clone().index_add_(axis, idx, src)
def _segment_sum(src, seg, n):
    out = torch.zeros((n,) + src.shape[1:], dtype=src.dtype)
    return out.index_add_(0, seg, src)
def _pad(x, pw):
    flat = tuple(v for pair in reversed(pw) for v in pair)
    return torch.nn.functional.pad(x, flat)

kernel_name = 'standalone__self_sup_conv_stem_hubert__speech'

def setup_inputs():

    _w = (lambda a: (lambda t: t.to(torch.bfloat16) if t.is_floating_point() else t)(torch.as_tensor(a)))
    B, T, D, K = 2, 4000, 512, 3
    scale = (1.0 / (K * D)) ** 0.5
    return {
        "x": _w((lambda *s: torch.randn(*s, dtype=torch.bfloat16) * 0.05)(B, T, D)),
        "w": _w((lambda *s: torch.randn(*s, dtype=torch.bfloat16) * 0.05)(K, D, D) * scale),
        "b": _w((lambda *s: torch.randn(*s, dtype=torch.bfloat16) * 0.05)(D) * 0.1),
        "gamma": _w(torch.ones((D,), dtype=float)),
        "beta": _w(torch.zeros((D,), dtype=float)),
    }

def reference(x, w, b, gamma, beta):
    B, T, D = x.shape
    K = w.shape[0]
    s = 2
    L = (T - K) // s + 1
    y = torch.einsum('blc,cd->bld', x[:, 0 : s * L : s, :], w[0])
    for i in range(1, K):
        y = y + torch.einsum('blc,cd->bld', x[:, i : i + s * L : s, :], w[i])
    y = y + b[None, None, :]
    mu = y.mean(1, keepdims=True)
    var = ((y - mu) ** 2).mean(1, keepdims=True)
    yn = (y - mu) / torch.sqrt(var + 1e-5)
    yn = yn * gamma[None, None, :] + beta[None, None, :]
    return _gelu(yn)
```

```python
import sys

HEADER = """; Kernarg layout for this problem (64 bytes, ptrs only, base s[0:1]):
"""

L = 1999
T_IN = 4000
D = 512
NCH = 24
NB = 5
NA = 4
STATS_OFF = 0x400000
Y_BYTES = 2 * L * D * 2
WS_BYTES = STATS_OFF + 2 * 16 * 512 * 8

out = []
def e(s):
    out.append("    " + s)
def lab(s):
    out.append(s + ":")

def gemm_kernel():
    lab("conv_gemm_kernel")
    e("s_cmp_ge_u32 s2, 256")
    e("s_cbranch_scc1 L_g_done")
    e("s_load_dwordx4 s[4:7], s[0:1], 0")
    e("s_load_dwordx2 s[8:9], s[0:1], 16")
    e("s_load_dwordx2 s[10:11], s[0:1], 56")
    e("s_and_b32 s34, s2, 7")
    e("s_lshr_b32 s35, s2, 3")
    e("s_lshl_b32 s34, s34, 2")
    e("s_lshr_b32 s29, s35, 3")
    e("s_add_u32 s29, s29, s34")
    e("s_and_b32 s30, s35, 7")
    e("s_lshr_b32 s28, s29, 4")
    e("s_and_b32 s29, s29, 15")
    e("s_lshl_b32 s32, s30, 6")
    e("s_lshl_b32 s33, s29, 7")
    e("v_and_b32 v1, 63, v0")
    e("v_lshrrev_b32 v2, 6, v0")
    e("s_nop 0")
    e("v_readfirstlane_b32 s31, v2")
    e("s_waitcnt lgkmcnt(0)")
    e("s_mov_b32 s12, s4"); e("s_and_b32 s13, s5, 0xffff"); e("s_mov_b32 s14, %d" % (2*T_IN*D*2)); e("s_mov_b32 s15, 0x00020000")
    e("s_mov_b32 s16, s6"); e("s_and_b32 s17, s7, 0xffff"); e("s_mov_b32 s18, %d" % (3*D*D*2)); e("s_mov_b32 s19, 0x00020000")
    e("s_mov_b32 s20, s10"); e("s_and_b32 s21, s11, 0xffff"); e("s_mov_b32 s22, %d" % WS_BYTES); e("s_mov_b32 s23, 0x00020000")
    e("s_mov_b32 s24, s8"); e("s_and_b32 s25, s9, 0xffff"); e("s_mov_b32 s26, %d" % (D*2)); e("s_mov_b32 s27, 0x00020000")
    e("s_lshl_b32 s34, s31, 5")
    e("s_add_u32 s34, s34, s33")
    e("v_and_b32 v8, 31, v1")
    e("v_add_u32 v9, s34, v8")
    e("v_lshlrev_b32 v9, 1, v9")
    e("s_mul_i32 s35, s28, %d" % T_IN)
    e("v_add_u32 v9, s35, v9")
    e("v_lshlrev_b32 v9, 10, v9")
    e("v_lshrrev_b32 v10, 5, v1")
    e("v_lshlrev_b32 v10, 4, v10")
    e("v_add_u32 v2, v9, v10")
    e("v_lshrrev_b32 v9, 3, v1")
    e("s_lshl_b32 s35, s31, 4")
    e("v_add_u32 v9, s35, v9")
    e("v_lshlrev_b32 v9, 10, v9")
    e("v_and_b32 v10, 7, v1")
    e("v_lshrrev_b32 v11, 4, v1")
    e("v_and_b32 v11, 1, v11")
    e("v_lshlrev_b32 v11, 2, v11")
    e("v_xor_b32 v10, v10, v11")
    e("v_lshlrev_b32 v10, 4, v10")
    e("v_add_u32 v9, v9, v10")
    e("s_lshl_b32 s35, s32, 1")
    e("v_add_u32 v3, s35, v9")
    e("v_lshrrev_b32 v9, 5, v1")
    e("v_lshlrev_b32 v9, 3, v9")
    e("v_bfe_u32 v10, v1, 2, 2")
    e("v_add_u32 v9, v9, v10")
    e("v_lshlrev_b32 v9, 7, v9")
    e("v_bfe_u32 v11, v1, 4, 1")
    e("v_lshlrev_b32 v11, 1, v11")
    e("v_bfe_u32 v12, v1, 1, 1")
    e("v_add_u32 v11, v11, v12")
    e("v_bfe_u32 v12, v1, 3, 1")
    e("v_lshlrev_b32 v12, 2, v12")
    e("v_add_u32 v13, v11, v12")
    e("v_xor_b32 v12, 4, v12")
    e("v_add_u32 v14, v11, v12")
    e("v_and_b32 v15, 1, v1")
    e("v_lshlrev_b32 v15, 3, v15")
    e("v_add_u32 v9, v9, v15")
    e("v_lshlrev_b32 v13, 4, v13")
    e("v_lshlrev_b32 v14, 4, v14")
    e("v_add_u32 v4, v9, v13")
    e("v_add_u32 v5, v9, v14")
    e("v_lshlrev_b32 v9, 1, v8")
    e("s_lshl_b32 s35, s32, 1")
    e("v_add_u32 v9, s35, v9")
    e("buffer_load_ushort v6, v9, s[24:27], 0 offen")
    e("buffer_load_ushort v7, v9, s[24:27], 0 offen offset:64")
    for i in range(32):
        e("v_mov_b32 v%d, 0" % (32 + i))
    e("s_lshl_b32 s39, s31, 11")

    issued = []
    def waitcnt_for(tags, lgkm0=True):
        idx = max(i for i, t in enumerate(issued) if t in tags)
        n = len(issued) - 1 - idx
        assert n <= 63
        e("s_waitcnt vmcnt(%d)%s" % (n, " lgkmcnt(0)" if lgkm0 else ""))

    def dma(c):
        buf = c % NB
        for q in range(2):
            e("s_add_u32 s40, s39, %d" % (buf * 8192 + q * 1024))
            e("s_mov_b32 m0, s40")
            e("s_mov_b32 s41, %d" % (c * 64 * 1024 + q * 8192))
            e("buffer_load_dwordx4 v3, s[16:19], s41 offen lds")
            issued.append(("D", c))

    def aload(c):
        st = c % NA
        for s in range(4):
            r = 64 + 16 * st + 4 * s
            e("s_mov_b32 s42, %d" % (c * 128))
            e("buffer_load_dwordx4 v[%d:%d], v2, s[12:15], s42 offen offset:%d" % (r, r + 3, 32 * s))
            issued.append(("A", c))

    def fragreads(c, s, j):
        buf = c % NB
        u = c % 2
        r = 128 + 32 * u + 8 * s + 4 * j
        for h in range(2):
            e("ds_read_b64_tr_b16 v[%d:%d], v%d offset:%d" % (r + 2 * h, r + 2 * h + 1, 4 + j, buf * 8192 + 2048 * s + 512 * h))

    for i in range(-NB, 0):
        if i + NB < NCH:
            dma(i + NB)
        if i + NA >= 0:
            aload(i + NA)
    waitcnt_for({("D", 0)}, lgkm0=False)
    e("s_barrier")
    for s in range(4):
        for j in range(2):
            fragreads(0, s, j)

    for t in range(NCH):
        tags = {("A", t)}
        if t + 1 < NCH:
            tags.add(("D", t + 1))
        waitcnt_for(tags)
        e("s_barrier")
        if t + NB < NCH:
            dma(t + NB)
        u = t % 2
        st = t % NA
        for s in range(4):
            for j in range(2):
                a = 64 + 16 * st + 4 * s
                b = 128 + 32 * u + 8 * s + 4 * j
                d = 32 + 16 * j
                e("v_mfma_f32_32x32x16_bf16 v[%d:%d], v[%d:%d], v[%d:%d], v[%d:%d]" % (d, d + 15, a, a + 3, b, b + 3, d, d + 15))
                if t + 1 < NCH:
                    fragreads(t + 1, s, j)
        if t + NA < NCH:
            aload(t + NA)

    e("s_waitcnt vmcnt(0) lgkmcnt(0)")
    e("s_barrier")
    e("s_nop 7"); e("s_nop 7")
    e("v_lshlrev_b32 v6, 16, v6")
    e("v_lshlrev_b32 v7, 16, v7")
    for j in range(2):
        for i in range(16):
            e("v_add_f32 v%d, v%d, v%d" % (32 + 16 * j + i, 32 + 16 * j + i, 6 + j))
    e("v_lshrrev_b32 v24, 5, v1")
    e("v_lshlrev_b32 v24, 2, v24")
    e("v_add_u32 v24, s34, v24")
    for i in range(16):
        off = 8 * (i // 4) + (i % 4)
        e("v_add_u32 v25, %d, v24" % off)
        e("v_cmp_gt_u32 vcc, %d, v25" % L) if False else None
        e("v_cmp_gt_u32 vcc, s43, v25") if False else None
    out_masks_start = len(out)
    e("s_mov_b32 s43, %d" % L)
    for i in range(16):
        off = 8 * (i // 4) + (i % 4)
        e("v_add_u32 v25, %d, v24" % off)
        e("v_cmp_gt_u32 vcc, s43, v25")
        e("s_nop 1")
        e("v_cndmask_b32 v%d, 0, 1.0, vcc" % (8 + i))
    for j in range(2):
        e("v_mov_b32 v%d, 0" % (26 + j))
        for i in range(16):
            e("v_fmac_f32 v%d, v%d, v%d" % (26 + j, 32 + 16 * j + i, 8 + i))
    for j in range(2):
        e("v_mov_b32 v28, v%d" % (26 + j))
        e("s_nop 1")
        e("v_permlane32_swap_b32 v%d, v28" % (26 + j))
        e("s_nop 1")
        e("v_add_f32 v%d, v%d, v28" % (26 + j, 26 + j))
    e("s_sub_i32 s44, %d, s34" % L)
    e("s_max_i32 s44, s44, 0")
    e("s_min_i32 s44, s44, 32")
    e("s_max_i32 s45, s44, 1")
    e("v_cvt_f32_u32 v29, s45")
    e("v_rcp_f32 v29, v29")
    e("s_nop 0")
    for j in range(2):
        e("v_mul_f32 v%d, v%d, v29" % (30 + j, 26 + j))
    for j in range(2):
        e("v_mov_b32 v%d, 0" % (64 + j))
        for i in range(16):
            e("v_sub_f32 v66, v%d, v%d" % (32 + 16 * j + i, 30 + j))
            e("v_mul_f32 v66, v66, v%d" % (8 + i))
            e("v_fmac_f32 v%d, v66, v66" % (64 + j))
    for j in range(2):
        e("v_mov_b32 v28, v%d" % (64 + j))
        e("s_nop 1")
        e("v_permlane32_swap_b32 v%d, v28" % (64 + j))
        e("s_nop 1")
        e("v_add_f32 v%d, v%d, v28" % (64 + j, 64 + j))
    e("v_cmp_gt_u32 vcc, 32, v1")
    e("s_nop 1")
    e("v_cndmask_b32 v68, v27, v26, vcc")
    e("v_cndmask_b32 v69, v65, v64, vcc")
    e("v_lshlrev_b32 v70, 3, v0")
    e("v_add_u32 v70, 32768, v70")
    e("ds_write_b64 v70, v[68:69]")
    e("s_lshl_b32 s46, s31, 12")
    e("v_lshrrev_b32 v71, 5, v1")
    e("v_lshlrev_b32 v71, 2, v71")
    e("v_lshlrev_b32 v71, 7, v71")
    e("v_lshlrev_b32 v72, 1, v8") if False else None
    e("v_and_b32 v72, 31, v1")
    e("v_lshlrev_b32 v72, 1, v72")
    e("v_add_u32 v71, v71, v72")
    e("v_add_u32 v71, s46, v71")
    for j in range(2):
        for i in range(0, 16, 2):
            e("v_cvt_pk_bf16_f32 v73, v%d, v%d" % (32 + 16 * j + i, 32 + 16 * j + i + 1))
            r0 = 8 * (i // 4) + (i % 4)
            e("ds_write_b16 v71, v73 offset:%d" % (r0 * 128 + 64 * j))
            e("ds_write_b16_d16_hi v71, v73 offset:%d" % ((r0 + 1) * 128 + 64 * j))
    e("s_waitcnt lgkmcnt(0)")
    e("v_lshlrev_b32 v71, 4, v1")
    e("v_add_u32 v71, s46, v71")
    for q in range(4):
        e("ds_read_b128 v[%d:%d], v71 offset:%d" % (76 + 4 * q, 76 + 4 * q + 3, 1024 * q))
    e("v_lshrrev_b32 v72, 3, v1")
    e("v_add_u32 v72, s34, v72")
    e("s_mul_i32 s35, s28, %d" % L)
    e("v_add_u32 v73, s35, v72")
    e("v_lshlrev_b32 v73, 10, v73")
    e("v_and_b32 v74, 7, v1")
    e("v_lshlrev_b32 v74, 4, v74")
    e("v_add_u32 v73, v73, v74")
    e("s_lshl_b32 s35, s32, 1")
    e("v_add_u32 v73, s35, v73")
    e("s_waitcnt lgkmcnt(0)")
    for q in range(4):
        e("v_add_u32 v74, %d, v72" % (8 * q))
        e("v_cmp_gt_u32 vcc, s43, v74")
        e("s_and_saveexec_b64 s[48:49], vcc")
        e("buffer_store_dwordx4 v[%d:%d], v73, s[20:23], 0 offen offset:%d" % (76 + 4 * q, 76 + 4 * q + 3, 0))
        e("s_mov_b64 exec, s[48:49]")
        if q < 3:
            e("v_add_u32 v73, 8192, v73")
    e("s_waitcnt lgkmcnt(0)")
    e("s_barrier")
    e("s_cmp_lg_u32 s31, 0")
    e("s_cbranch_scc1 L_g_done")
    e("v_lshlrev_b32 v70, 3, v1")
    e("v_add_u32 v70, 32768, v70")
    for w in range(4):
        e("ds_read_b64 v[%d:%d], v70 offset:%d" % (80 + 2 * w, 81 + 2 * w, 512 * w))
    for w in range(4):
        e("s_sub_i32 s%d, %d, s33" % (50 + w, L - 32 * w))
        e("s_max_i32 s%d, s%d, 0" % (50 + w, 50 + w))
        e("s_min_i32 s%d, s%d, 32" % (50 + w, 50 + w))
    e("s_add_u32 s54, s50, s51"); e("s_add_u32 s54, s54, s52"); e("s_add_u32 s54, s54, s53")
    e("v_cvt_f32_u32 v90, s54")
    e("v_rcp_f32 v90, v90")
    e("s_waitcnt lgkmcnt(0)")
    e("v_add_f32 v91, v80, v82")
    e("v_add_f32 v91, v91, v84")
    e("v_add_f32 v91, v91, v86")
    e("v_mul_f32 v92, v91, v90")
    e("v_add_f32 v93, v81, v83")
    e("v_add_f32 v93, v93, v85")
    e("v_add_f32 v93, v93, v87")
    for w in range(4):
        e("s_max_i32 s55, s%d, 1" % (50 + w))
        e("v_cvt_f32_u32 v94, s55")
        e("v_rcp_f32 v94, v94")
        e("v_cvt_f32_u32 v95, s%d" % (50 + w))
        e("v_mul_f32 v94, v%d, v94" % (80 + 2 * w))
        e("v_sub_f32 v94, v94, v92")
        e("v_mul_f32 v94, v94, v94")
        e("v_fmac_f32 v93, v95, v94")
    e("s_lshl_b32 s35, s28, 4")
    e("s_add_u32 s35, s35, s29")
    e("s_lshl_b32 s35, s35, 9")
    e("s_add_u32 s35, s35, s32")
    e("s_lshl_b32 s35, s35, 3")
    e("s_add_u32 s35, s35, %d" % STATS_OFF)
    e("v_lshlrev_b32 v70, 3, v1")
    e("v_add_u32 v70, s35, v70")
    e("v_mov_b32 v92, v93")
    e("v_mov_b32 v90, v91")
    e("v_mov_b32 v91, v92")
    e("buffer_store_dwordx2 v[90:91], v70, s[20:23], 0 offen")
    lab("L_g_done")
    e("s_endpgm")


def norm_kernel():
    lab("norm_gelu_kernel")
    e("s_cmp_ge_u32 s2, 256")
    e("s_cbranch_scc1 L_n_done")
    e("s_load_dwordx4 s[4:7], s[0:1], 24")
    e("s_load_dwordx2 s[8:9], s[0:1], 40")
    e("s_load_dwordx2 s[10:11], s[0:1], 56")
    e("s_and_b32 s34, s2, 7")
    e("s_lshr_b32 s35, s2, 3")
    e("s_lshl_b32 s34, s34, 2")
    e("s_lshr_b32 s29, s35, 3")
    e("s_add_u32 s29, s29, s34")
    e("s_and_b32 s30, s35, 7")
    e("s_lshr_b32 s28, s29, 4")
    e("s_and_b32 s29, s29, 15")
    e("s_lshl_b32 s32, s30, 6")
    e("s_lshl_b32 s33, s29, 7")
    e("s_waitcnt lgkmcnt(0)")
    e("s_mov_b32 s12, s4"); e("s_and_b32 s13, s5, 0xffff"); e("s_mov_b32 s14, %d" % (D*2)); e("s_mov_b32 s15, 0x00020000")
    e("s_mov_b32 s16, s6"); e("s_and_b32 s17, s7, 0xffff"); e("s_mov_b32 s18, %d" % (D*2)); e("s_mov_b32 s19, 0x00020000")
    e("s_mov_b32 s20, s10"); e("s_and_b32 s21, s11, 0xffff"); e("s_mov_b32 s22, %d" % WS_BYTES); e("s_mov_b32 s23, 0x00020000")
    e("s_mov_b32 s24, s8"); e("s_and_b32 s25, s9, 0xffff"); e("s_mov_b32 s26, %d" % Y_BYTES); e("s_mov_b32 s27, 0x00020000")
    e("v_lshrrev_b32 v2, 3, v0")
    e("v_add_u32 v2, s33, v2")
    e("s_mul_i32 s35, s28, %d" % L)
    e("v_add_u32 v3, s35, v2")
    e("v_lshlrev_b32 v3, 10, v3")
    e("v_and_b32 v4, 7, v0")
    e("v_lshlrev_b32 v4, 4, v4")
    e("v_add_u32 v3, v3, v4")
    e("s_lshl_b32 s35, s32, 1")
    e("v_add_u32 v3, s35, v3")
    e("s_mov_b32 s43, %d" % L)
    for p in range(4):
        e("s_mov_b32 s36, %d" % (32768 * p))
        e("buffer_load_dwordx4 v[%d:%d], v3, s[20:23], s36 offen" % (32 + 4 * p, 35 + 4 * p))
    e("v_cmp_gt_u32 vcc, 64, v0")
    e("s_and_saveexec_b64 s[48:49], vcc")
    e("s_cbranch_execz L_n_skip")
    e("s_lshl_b32 s35, s28, 4")
    e("s_lshl_b32 s35, s35, 9")
    e("s_add_u32 s35, s35, s32")
    e("s_lshl_b32 s35, s35, 3")
    e("s_add_u32 s35, s35, %d" % STATS_OFF)
    e("v_lshlrev_b32 v5, 3, v0")
    e("v_add_u32 v5, s35, v5")
    for t in range(16):
        e("s_mov_b32 s36, %d" % (4096 * t))
        e("buffer_load_dwordx2 v[%d:%d], v5, s[20:23], s36 offen" % (64 + 2 * t, 65 + 2 * t))
    e("v_lshlrev_b32 v6, 1, v0")
    e("s_lshl_b32 s35, s32, 1")
    e("v_add_u32 v6, s35, v6")
    e("buffer_load_ushort v7, v6, s[12:15], 0 offen")
    e("buffer_load_ushort v8, v6, s[16:19], 0 offen")
    e("s_waitcnt vmcnt(0)")
    e("v_lshlrev_b32 v7, 16, v7")
    e("v_lshlrev_b32 v8, 16, v8")
    e("v_mov_b32 v9, 0")
    e("v_mov_b32 v10, 0")
    for t in range(16):
        e("v_add_f32 v9, v9, v%d" % (64 + 2 * t))
        e("v_add_f32 v10, v10, v%d" % (65 + 2 * t))
    e("s_mov_b32 s36, 0x3a03126f") if False else None
    import struct
    invL = struct.unpack("<I", struct.pack("<f", 1.0 / L))[0]
    e("s_mov_b32 s36, 0x%08x" % invL)
    e("v_mul_f32 v11, s36, v9")
    for t in range(16):
        n_t = 128 if t < 15 else L - 15 * 128
        inv = struct.unpack("<I", struct.pack("<f", 1.0 / n_t))[0]
        nf = struct.unpack("<I", struct.pack("<f", float(n_t)))[0]
        e("s_mov_b32 s37, 0x%08x" % inv)
        e("v_mul_f32 v12, s37, v%d" % (64 + 2 * t))
        e("v_sub_f32 v12, v12, v11")
        e("v_mul_f32 v12, v12, v12")
        e("s_mov_b32 s37, 0x%08x" % nf)
        e("v_fmac_f32 v10, s37, v12")
    e("v_mul_f32 v10, s36, v10")
    eps = struct.unpack("<I", struct.pack("<f", 1e-5))[0]
    e("v_add_f32 v10, 0x%08x, v10" % eps)
    e("v_rsq_f32 v10, v10")
    e("s_nop 0")
    e("v_mul_f32 v12, v10, v7")
    e("v_mul_f32 v13, v11, v12")
    e("v_sub_f32 v13, v8, v13")
    e("v_lshlrev_b32 v5, 3, v0")
    e("ds_write_b64 v5, v[12:13]")
    lab("L_n_skip")
    e("s_mov_b64 exec, s[48:49]")
    e("s_waitcnt lgkmcnt(0)")
    e("s_barrier")
    e("v_and_b32 v4, 7, v0")
    e("v_lshlrev_b32 v4, 6, v4")
    for q in range(4):
        e("ds_read_b128 v[%d:%d], v4 offset:%d" % (16 + 4 * q, 19 + 4 * q, 16 * q))
    e("s_waitcnt vmcnt(0) lgkmcnt(0)")
    c1 = struct.unpack("<I", struct.pack("<f", 0.044715))[0]
    import math
    c2 = struct.unpack("<I", struct.pack("<f", -2.0 * math.sqrt(2.0 / math.pi) * math.log2(math.e)))[0]
    e("s_mov_b32 s37, 0x%08x" % c1)
    e("s_mov_b32 s38, 0x%08x" % c2)
    for p in range(4):
        for k in range(8):
            src = 32 + 4 * p + k // 2
            if k % 2 == 0:
                e("v_lshlrev_b32 v48, 16, v%d" % src)
            else:
                e("v_and_b32 v48, 0xffff0000, v%d" % src)
            sc = 16 + 2 * k
            sh = 17 + 2 * k
            e("v_fma_f32 v48, v48, v%d, v%d" % (sc, sh))
            e("v_mul_f32 v49, v48, v48")
            e("v_fma_f32 v49, v49, s37, 1.0")
            e("v_mul_f32 v49, v49, v48")
            e("v_mul_f32 v49, s38, v49")
            e("v_exp_f32 v49, v49")
            e("s_nop 0")
            e("v_add_f32 v49, 1.0, v49")
            e("v_rcp_f32 v49, v49")
            e("s_nop 0")
            e("v_mul_f32 v%d, v48, v49" % (50 + k))
        for k in range(4):
            e("v_cvt_pk_bf16_f32 v%d, v%d, v%d" % (60 + k, 50 + 2 * k, 51 + 2 * k))
        e("v_add_u32 v5, %d, v2" % (32 * p))
        e("v_cmp_gt_u32 vcc, s43, v5")
        e("s_and_saveexec_b64 s[48:49], vcc")
        e("s_mov_b32 s36, %d" % (32768 * p))
        e("buffer_store_dwordx4 v[60:63], v3, s[24:27], s36 offen")
        e("s_mov_b64 exec, s[48:49]")
        e("s_nop 1")
    lab("L_n_done")
    e("s_endpgm")


def kd(name, vgpr):
    return """.amdhsa_kernel %s
  .amdhsa_next_free_vgpr %d
  .amdhsa_next_free_sgpr 102
  .amdhsa_accum_offset %d
  .amdhsa_group_segment_fixed_size 0
  .amdhsa_kernarg_size 64
  .amdhsa_user_sgpr_count 2
  .amdhsa_user_sgpr_kernarg_segment_ptr 1
  .amdhsa_system_sgpr_workgroup_id_x 1
.end_amdhsa_kernel
""" % (name, vgpr, vgpr)

txt = HEADER
txt += "; @launch kernel=conv_gemm_kernel grid=(256,1,1) block=(256,1,1) lds=40960\n"
txt += "; @launch kernel=norm_gelu_kernel grid=(256,1,1) block=(256,1,1) lds=512\n"
txt += '.amdgcn_target "amdgcn-amd-amdhsa--gfx950"\n.text\n'
for name, fn in (("conv_gemm_kernel", gemm_kernel), ("norm_gelu_kernel", norm_kernel)):
    out.clear()
    fn()
    txt += ".globl %s\n.p2align 8\n.type %s,@function\n" % (name, name)
    txt += "\n".join(x for x in out if x is not None) + "\n"
txt += '.section .rodata,"a"\n.p2align 6\n'
txt += kd("conv_gemm_kernel", 256)
txt += ".p2align 6\n"
txt += kd("norm_gelu_kernel", 128)
open(sys.argv[1] if len(sys.argv) > 1 else "standalone__self_sup_conv_stem_hubert__speech.s", "w").write(txt)
```

```python
import sys, os

HEADER = """; Kernarg layout for this problem (64 bytes, ptrs only, base s[0:1]):
"""

L = 1999
T_IN = 4000
D = 512
NCH = 24
NB = int(os.environ.get("NB", 5))
NA = int(os.environ.get("NA", 4))
ABASE = NB * 8192
XST = 33792
NX = 3
OOFF = 17408
STATS_OFF = 0x400000
Y_BYTES = 2 * L * D * 2
WS_BYTES = STATS_OFF + 2 * 16 * 512 * 8

import os
FL = os.environ.get('FL', '')
out = []
def e(s):
    out.append("    " + s)
def lab(s):
    out.append(s + ":")

def gemm_kernel():
    lab("conv_gemm_kernel")
    e("s_cmp_ge_u32 s2, 256")
    e("s_cbranch_scc1 L_g_done")
    if 'exit' in FL: e("s_branch L_g_done")
    e("s_load_dwordx4 s[4:7], s[0:1], 0")
    e("s_load_dwordx2 s[8:9], s[0:1], 16")
    e("s_load_dwordx2 s[10:11], s[0:1], 56")
    e("s_and_b32 s34, s2, 7")
    e("s_lshr_b32 s35, s2, 3")
    e("s_lshl_b32 s34, s34, 2")
    e("s_lshr_b32 s29, s35, 3")
    e("s_add_u32 s29, s29, s34")
    e("s_and_b32 s30, s35, 7")
    e("s_lshr_b32 s28, s29, 4")
    e("s_and_b32 s29, s29, 15")
    e("s_lshl_b32 s32, s30, 6")
    e("s_lshl_b32 s33, s29, 7")
    e("v_and_b32 v1, 63, v0")
    e("v_lshrrev_b32 v2, 6, v0")
    e("s_nop 0")
    e("v_readfirstlane_b32 s31, v2")
    e("s_waitcnt lgkmcnt(0)")
    e("s_mov_b32 s12, s4"); e("s_and_b32 s13, s5, 0xffff"); e("s_mov_b32 s14, %d" % (2*T_IN*D*2)); e("s_mov_b32 s15, 0x00020000")
    e("s_mov_b32 s16, s6"); e("s_and_b32 s17, s7, 0xffff"); e("s_mov_b32 s18, %d" % (3*D*D*2)); e("s_mov_b32 s19, 0x00020000")
    e("s_mov_b32 s20, s10"); e("s_and_b32 s21, s11, 0xffff"); e("s_mov_b32 s22, %d" % WS_BYTES); e("s_mov_b32 s23, 0x00020000")
    e("s_mov_b32 s24, s8"); e("s_and_b32 s25, s9, 0xffff"); e("s_mov_b32 s26, %d" % (D*2)); e("s_mov_b32 s27, 0x00020000")
    e("s_lshl_b32 s34, s31, 5")
    e("s_add_u32 s34, s34, s33")
    e("v_and_b32 v8, 31, v1")
    e("v_lshrrev_b32 v9, 3, v1")
    e("v_add_u32 v9, s34, v9")
    e("v_lshlrev_b32 v9, 1, v9")
    e("s_mul_i32 s35, s28, %d" % T_IN)
    e("v_add_u32 v9, s35, v9")
    e("v_lshlrev_b32 v9, 10, v9")
    e("v_and_b32 v10, 7, v1")
    e("v_lshrrev_b32 v11, 4, v1")
    e("v_xor_b32 v10, v10, v11")
    e("v_xor_b32 v11, 4, v10")
    e("v_lshlrev_b32 v10, 4, v10")
    e("v_lshlrev_b32 v11, 4, v11")
    e("v_add_u32 v2, v9, v10")
    e("v_add_u32 v16, v9, v11")
    e("v_lshrrev_b32 v10, 5, v1")
    e("s_lshl_b32 s35, s31, 5")
    for dl in range(2):
        e("v_add_u32 v12, s35, v8")
        if dl: e("v_add_u32 v12, 1, v12")
        e("v_bfe_u32 v11, v12, 1, 3")
        e("v_lshlrev_b32 v12, 7, v12")
        for st_ in range(4):
            e("v_add_u32 v13, %d, v10" % (2 * st_))
            e("v_xor_b32 v13, v13, v11")
            e("v_lshlrev_b32 v13, 4, v13")
            e("v_add_u32 v%d, v12, v13" % (17 + 4 * dl + st_))
    e("s_lshl_b32 s56, s31, 16")
    e("s_sub_u32 s56, %d, s56" % (128 * 2048))
    e("v_lshrrev_b32 v9, 3, v1")
    e("s_lshl_b32 s35, s31, 4")
    e("v_add_u32 v9, s35, v9")
    e("v_lshlrev_b32 v9, 10, v9")
    e("v_and_b32 v10, 7, v1")
    e("v_lshrrev_b32 v11, 4, v1")
    e("v_and_b32 v11, 1, v11")
    e("v_lshlrev_b32 v11, 2, v11")
    e("v_xor_b32 v10, v10, v11")
    e("v_lshlrev_b32 v10, 4, v10")
    e("v_add_u32 v9, v9, v10")
    e("s_lshl_b32 s35, s32, 1")
    e("v_add_u32 v3, s35, v9")
    e("v_lshrrev_b32 v9, 5, v1")
    e("v_lshlrev_b32 v9, 3, v9")
    e("v_bfe_u32 v10, v1, 2, 2")
    e("v_add_u32 v9, v9, v10")
    e("v_lshlrev_b32 v9, 7, v9")
    e("v_bfe_u32 v11, v1, 4, 1")
    e("v_lshlrev_b32 v11, 1, v11")
    e("v_bfe_u32 v12, v1, 1, 1")
    e("v_add_u32 v11, v11, v12")
    e("v_bfe_u32 v12, v1, 3, 1")
    e("v_lshlrev_b32 v12, 2, v12")
    e("v_add_u32 v13, v11, v12")
    e("v_xor_b32 v12, 4, v12")
    e("v_add_u32 v14, v11, v12")
    e("v_and_b32 v15, 1, v1")
    e("v_lshlrev_b32 v15, 3, v15")
    e("v_add_u32 v9, v9, v15")
    e("v_lshlrev_b32 v13, 4, v13")
    e("v_lshlrev_b32 v14, 4, v14")
    e("v_add_u32 v4, v9, v13")
    e("v_add_u32 v5, v9, v14")
    e("v_lshlrev_b32 v9, 1, v8")
    e("s_lshl_b32 s35, s32, 1")
    e("v_add_u32 v9, s35, v9")
    e("buffer_load_ushort v6, v9, s[24:27], 0 offen")
    e("buffer_load_ushort v7, v9, s[24:27], 0 offen offset:64")
    for i in range(32):
        e("v_mov_b32 v%d, 0" % (32 + i))
    e("s_lshl_b32 s39, s31, 11")
    e("s_lshl_b32 s47, s31, 12")

    issued = []
    def waitcnt_for(tags, lgkm0=True):
        idx = max(i for i, t in enumerate(issued) if t in tags)
        n = len(issued) - 1 - idx
        assert n <= 63
        e("s_waitcnt vmcnt(%d)%s" % (n, " lgkmcnt(0)" if lgkm0 else ""))

    def dma(c):
        buf = c % NB
        cc, tap = c // 3, c % 3
        for q in range(2):
            e("s_add_u32 s40, s39, %d" % (buf * 8192 + q * 1024))
            e("s_mov_b32 m0, s40")
            e("s_mov_b32 s41, %d" % ((tap * 512 + cc * 64) * 1024 + q * 8192))
            e("buffer_load_dwordx4 v3, s[16:19], s41 offen lds" if 'noD' not in FL else "s_nop 0")
            issued.append(("D", c))

    def xload(cc, part):
        st = cc % NX
        if part < 2:
            for q in range(4):
                e("s_add_u32 s40, s47, %d" % (ABASE + st * XST + part * OOFF + q * 1024))
                e("s_mov_b32 m0, s40")
                e("s_mov_b32 s42, %d" % (cc * 128 + q * 16384 + part * 1024))
                e("buffer_load_dwordx4 v%d, s[12:15], s42 offen lds" % (2 if q % 2 == 0 else 16) if 'noA' not in FL else "s_nop 0")
                issued.append(("X", cc))
        else:
            e("s_mov_b32 m0, %d" % (ABASE + st * XST + 128 * 128))
            e("s_add_u32 s42, s56, %d" % (cc * 128))
            e("buffer_load_dwordx4 v2, s[12:15], s42 offen lds" if 'noA' not in FL else "s_nop 0")
            issued.append(("X", cc))

    def afragreads(c, s):
        cc, tap = c // 3, c % 3
        st = cc % NX
        u = c % 2
        r = 64 + 16 * u + 4 * s
        base = ABASE + st * XST + (OOFF if tap == 1 else 0)
        e("v_add_u32 v25, %d, v%d" % (base, 17 + (4 if tap == 2 else 0) + s))
        e("ds_read_b128 v[%d:%d], v25" % (r, r + 3))

    def fragreads(c, s, j):
        buf = c % NB
        u = c % 2
        r = 128 + 32 * u + 8 * s + 4 * j
        for h in range(2):
            e("ds_read_b64_tr_b16 v[%d:%d], v%d offset:%d" % (r + 2 * h, r + 2 * h + 1, 4 + j, buf * 8192 + 2048 * s + 512 * h))

    for cc in range(2):
        for part in range(3):
            xload(cc, part)
        if cc == 0:
            dma(0); dma(1)
    for c in range(2, NB):
        dma(c)
    waitcnt_for({("D", 0), ("X", 0)}, lgkm0=False)
    e("s_barrier")
    for s in range(4):
        afragreads(0, s)
        for j in range(2):
            fragreads(0, s, j)

    for t in range(NCH):
        if t + 1 < NCH:
            waitcnt_for({("D", t + 1), ("X", (t + 1) // 3)})
        else:
            e("s_waitcnt lgkmcnt(0)")
        e("s_barrier")
        if t + NB < NCH:
            dma(t + NB)
        if t // 3 + 2 < NCH // 3:
            xload(t // 3 + 2, t % 3)
        u = t % 2
        for s in range(4):
            for j in range(2):
                a = 64 + 16 * u + 4 * s
                b = 128 + 32 * u + 8 * s + 4 * j
                d = 32 + 16 * j
                if 'noM' not in FL: e("v_mfma_f32_32x32x16_bf16 v[%d:%d], v[%d:%d], v[%d:%d], v[%d:%d]" % (d, d + 15, a, a + 3, b, b + 3, d, d + 15))
                if t + 1 < NCH and 'noF' not in FL:
                    if j == 0:
                        afragreads(t + 1, s)
                    fragreads(t + 1, s, j)

    e("s_waitcnt vmcnt(0) lgkmcnt(0)")
    e("s_barrier")
    e("s_nop 7"); e("s_nop 7")
    e("v_lshlrev_b32 v6, 16, v6")
    e("v_lshlrev_b32 v7, 16, v7")
    for j in range(2):
        for i in range(16):
            e("v_add_f32 v%d, v%d, v%d" % (32 + 16 * j + i, 32 + 16 * j + i, 6 + j))
    e("v_lshrrev_b32 v24, 5, v1")
    e("v_lshlrev_b32 v24, 2, v24")
    e("v_add_u32 v24, s34, v24")
    for i in range(16):
        off = 8 * (i // 4) + (i % 4)
        e("v_add_u32 v25, %d, v24" % off)
        e("v_cmp_gt_u32 vcc, %d, v25" % L) if False else None
        e("v_cmp_gt_u32 vcc, s43, v25") if False else None
    out_masks_start = len(out)
    e("s_mov_b32 s43, %d" % L)
    for i in range(16):
        off = 8 * (i // 4) + (i % 4)
        e("v_add_u32 v25, %d, v24" % off)
        e("v_cmp_gt_u32 vcc, s43, v25")
        e("s_nop 1")
        e("v_cndmask_b32 v%d, 0, 1.0, vcc" % (8 + i))
    for j in range(2):
        e("v_mov_b32 v%d, 0" % (26 + j))
        for i in range(16):
            e("v_fmac_f32 v%d, v%d, v%d" % (26 + j, 32 + 16 * j + i, 8 + i))
    for j in range(2):
        e("v_mov_b32 v28, v%d" % (26 + j))
        e("s_nop 1")
        e("v_permlane32_swap_b32 v%d, v28" % (26 + j))
        e("s_nop 1")
        e("v_add_f32 v%d, v%d, v28" % (26 + j, 26 + j))
    e("s_sub_i32 s44, %d, s34" % L)
    e("s_max_i32 s44, s44, 0")
    e("s_min_i32 s44, s44, 32")
    e("s_max_i32 s45, s44, 1")
    e("v_cvt_f32_u32 v29, s45")
    e("v_rcp_f32 v29, v29")
    e("s_nop 0")
    for j in range(2):
        e("v_mul_f32 v%d, v%d, v29" % (30 + j, 26 + j))
    for j in range(2):
        e("v_mov_b32 v%d, 0" % (64 + j))
        for i in range(16):
            e("v_sub_f32 v66, v%d, v%d" % (32 + 16 * j + i, 30 + j))
            e("v_mul_f32 v66, v66, v%d" % (8 + i))
            e("v_fmac_f32 v%d, v66, v66" % (64 + j))
    for j in range(2):
        e("v_mov_b32 v28, v%d" % (64 + j))
        e("s_nop 1")
        e("v_permlane32_swap_b32 v%d, v28" % (64 + j))
        e("s_nop 1")
        e("v_add_f32 v%d, v%d, v28" % (64 + j, 64 + j))
    e("v_cmp_gt_u32 vcc, 32, v1")
    e("s_nop 1")
    e("v_cndmask_b32 v68, v27, v26, vcc")
    e("v_cndmask_b32 v69, v65, v64, vcc")
    e("v_lshlrev_b32 v70, 3, v0")
    e("v_add_u32 v70, 32768, v70")
    e("ds_write_b64 v70, v[68:69]")
    e("s_lshl_b32 s46, s31, 12")
    e("v_lshrrev_b32 v71, 5, v1")
    e("v_lshlrev_b32 v71, 2, v71")
    e("v_lshlrev_b32 v71, 7, v71")
    e("v_lshlrev_b32 v72, 1, v8") if False else None
    e("v_and_b32 v72, 31, v1")
    e("v_lshlrev_b32 v72, 1, v72")
    e("v_add_u32 v71, v71, v72")
    e("v_add_u32 v71, s46, v71")
    for j in range(2):
        for i in range(0, 16, 2):
            e("v_cvt_pk_bf16_f32 v73, v%d, v%d" % (32 + 16 * j + i, 32 + 16 * j + i + 1))
            r0 = 8 * (i // 4) + (i % 4)
            e("ds_write_b16 v71, v73 offset:%d" % (r0 * 128 + 64 * j))
            e("ds_write_b16_d16_hi v71, v73 offset:%d" % ((r0 + 1) * 128 + 64 * j))
    e("s_waitcnt lgkmcnt(0)")
    e("v_lshlrev_b32 v71, 4, v1")
    e("v_add_u32 v71, s46, v71")
    for q in range(4):
        e("ds_read_b128 v[%d:%d], v71 offset:%d" % (76 + 4 * q, 76 + 4 * q + 3, 1024 * q))
    e("v_lshrrev_b32 v72, 3, v1")
    e("v_add_u32 v72, s34, v72")
    e("s_mul_i32 s35, s28, %d" % L)
    e("v_add_u32 v73, s35, v72")
    e("v_lshlrev_b32 v73, 10, v73")
    e("v_and_b32 v74, 7, v1")
    e("v_lshlrev_b32 v74, 4, v74")
    e("v_add_u32 v73, v73, v74")
    e("s_lshl_b32 s35, s32, 1")
    e("v_add_u32 v73, s35, v73")
    e("s_waitcnt lgkmcnt(0)")
    for q in range(4):
        e("v_add_u32 v74, %d, v72" % (8 * q))
        e("v_cmp_gt_u32 vcc, s43, v74")
        e("s_and_saveexec_b64 s[48:49], vcc")
        e("buffer_store_dwordx4 v[%d:%d], v73, s[20:23], 0 offen offset:%d" % (76 + 4 * q, 76 + 4 * q + 3, 0))
        e("s_mov_b64 exec, s[48:49]")
        if q < 3:
            e("v_add_u32 v73, 8192, v73")
    e("s_waitcnt lgkmcnt(0)")
    e("s_barrier")
    e("s_cmp_lg_u32 s31, 0")
    e("s_cbranch_scc1 L_g_done")
    e("v_lshlrev_b32 v70, 3, v1")
    e("v_add_u32 v70, 32768, v70")
    for w in range(4):
        e("ds_read_b64 v[%d:%d], v70 offset:%d" % (80 + 2 * w, 81 + 2 * w, 512 * w))
    for w in range(4):
        e("s_sub_i32 s%d, %d, s33" % (50 + w, L - 32 * w))
        e("s_max_i32 s%d, s%d, 0" % (50 + w, 50 + w))
        e("s_min_i32 s%d, s%d, 32" % (50 + w, 50 + w))
    e("s_add_u32 s54, s50, s51"); e("s_add_u32 s54, s54, s52"); e("s_add_u32 s54, s54, s53")
    e("v_cvt_f32_u32 v90, s54")
    e("v_rcp_f32 v90, v90")
    e("s_waitcnt lgkmcnt(0)")
    e("v_add_f32 v91, v80, v82")
    e("v_add_f32 v91, v91, v84")
    e("v_add_f32 v91, v91, v86")
    e("v_mul_f32 v92, v91, v90")
    e("v_add_f32 v93, v81, v83")
    e("v_add_f32 v93, v93, v85")
    e("v_add_f32 v93, v93, v87")
    for w in range(4):
        e("s_max_i32 s55, s%d, 1" % (50 + w))
        e("v_cvt_f32_u32 v94, s55")
        e("v_rcp_f32 v94, v94")
        e("v_cvt_f32_u32 v95, s%d" % (50 + w))
        e("v_mul_f32 v94, v%d, v94" % (80 + 2 * w))
        e("v_sub_f32 v94, v94, v92")
        e("v_mul_f32 v94, v94, v94")
        e("v_fmac_f32 v93, v95, v94")
    e("s_lshl_b32 s35, s28, 4")
    e("s_add_u32 s35, s35, s29")
    e("s_lshl_b32 s35, s35, 9")
    e("s_add_u32 s35, s35, s32")
    e("s_lshl_b32 s35, s35, 3")
    e("s_add_u32 s35, s35, %d" % STATS_OFF)
    e("v_lshlrev_b32 v70, 3, v1")
    e("v_add_u32 v70, s35, v70")
    e("v_mov_b32 v92, v93")
    e("v_mov_b32 v90, v91")
    e("v_mov_b32 v91, v92")
    e("buffer_store_dwordx2 v[90:91], v70, s[20:23], 0 offen")
    lab("L_g_done")
    e("s_endpgm")


def norm_kernel():
    lab("norm_gelu_kernel")
    e("s_cmp_ge_u32 s2, 256")
    e("s_cbranch_scc1 L_n_done")
    e("s_load_dwordx4 s[4:7], s[0:1], 24")
    e("s_load_dwordx2 s[8:9], s[0:1], 40")
    e("s_load_dwordx2 s[10:11], s[0:1], 56")
    e("s_and_b32 s34, s2, 7")
    e("s_lshr_b32 s35, s2, 3")
    e("s_lshl_b32 s34, s34, 2")
    e("s_lshr_b32 s29, s35, 3")
    e("s_add_u32 s29, s29, s34")
    e("s_and_b32 s30, s35, 7")
    e("s_lshr_b32 s28, s29, 4")
    e("s_and_b32 s29, s29, 15")
    e("s_lshl_b32 s32, s30, 6")
    e("s_lshl_b32 s33, s29, 7")
    e("s_waitcnt lgkmcnt(0)")
    e("s_mov_b32 s12, s4"); e("s_and_b32 s13, s5, 0xffff"); e("s_mov_b32 s14, %d" % (D*2)); e("s_mov_b32 s15, 0x00020000")
    e("s_mov_b32 s16, s6"); e("s_and_b32 s17, s7, 0xffff"); e("s_mov_b32 s18, %d" % (D*2)); e("s_mov_b32 s19, 0x00020000")
    e("s_mov_b32 s20, s10"); e("s_and_b32 s21, s11, 0xffff"); e("s_mov_b32 s22, %d" % WS_BYTES); e("s_mov_b32 s23, 0x00020000")
    e("s_mov_b32 s24, s8"); e("s_and_b32 s25, s9, 0xffff"); e("s_mov_b32 s26, %d" % Y_BYTES); e("s_mov_b32 s27, 0x00020000")
    e("v_lshrrev_b32 v2, 3, v0")
    e("v_add_u32 v2, s33, v2")
    e("s_mul_i32 s35, s28, %d" % L)
    e("v_add_u32 v3, s35, v2")
    e("v_lshlrev_b32 v3, 10, v3")
    e("v_and_b32 v4, 7, v0")
    e("v_lshlrev_b32 v4, 4, v4")
    e("v_add_u32 v3, v3, v4")
    e("s_lshl_b32 s35, s32, 1")
    e("v_add_u32 v3, s35, v3")
    e("s_mov_b32 s43, %d" % L)
    for p in range(4):
        e("s_mov_b32 s36, %d" % (32768 * p))
        e("buffer_load_dwordx4 v[%d:%d], v3, s[20:23], s36 offen" % (32 + 4 * p, 35 + 4 * p))
    e("v_cmp_gt_u32 vcc, 64, v0")
    e("s_and_saveexec_b64 s[48:49], vcc")
    e("s_cbranch_execz L_n_skip")
    e("s_lshl_b32 s35, s28, 4")
    e("s_lshl_b32 s35, s35, 9")
    e("s_add_u32 s35, s35, s32")
    e("s_lshl_b32 s35, s35, 3")
    e("s_add_u32 s35, s35, %d" % STATS_OFF)
    e("v_lshlrev_b32 v5, 3, v0")
    e("v_add_u32 v5, s35, v5")
    for t in range(16):
        e("s_mov_b32 s36, %d" % (4096 * t))
        e("buffer_load_dwordx2 v[%d:%d], v5, s[20:23], s36 offen" % (64 + 2 * t, 65 + 2 * t))
    e("v_lshlrev_b32 v6, 1, v0")
    e("s_lshl_b32 s35, s32, 1")
    e("v_add_u32 v6, s35, v6")
    e("buffer_load_ushort v7, v6, s[12:15], 0 offen")
    e("buffer_load_ushort v8, v6, s[16:19], 0 offen")
    e("s_waitcnt vmcnt(0)")
    e("v_lshlrev_b32 v7, 16, v7")
    e("v_lshlrev_b32 v8, 16, v8")
    e("v_mov_b32 v9, 0")
    e("v_mov_b32 v10, 0")
    for t in range(16):
        e("v_add_f32 v9, v9, v%d" % (64 + 2 * t))
        e("v_add_f32 v10, v10, v%d" % (65 + 2 * t))
    e("s_mov_b32 s36, 0x3a03126f") if False else None
    import struct
    invL = struct.unpack("<I", struct.pack("<f", 1.0 / L))[0]
    e("s_mov_b32 s36, 0x%08x" % invL)
    e("v_mul_f32 v11, s36, v9")
    for t in range(16):
        n_t = 128 if t < 15 else L - 15 * 128
        inv = struct.unpack("<I", struct.pack("<f", 1.0 / n_t))[0]
        nf = struct.unpack("<I", struct.pack("<f", float(n_t)))[0]
        e("s_mov_b32 s37, 0x%08x" % inv)
        e("v_mul_f32 v12, s37, v%d" % (64 + 2 * t))
        e("v_sub_f32 v12, v12, v11")
        e("v_mul_f32 v12, v12, v12")
        e("s_mov_b32 s37, 0x%08x" % nf)
        e("v_fmac_f32 v10, s37, v12")
    e("v_mul_f32 v10, s36, v10")
    eps = struct.unpack("<I", struct.pack("<f", 1e-5))[0]
    e("v_add_f32 v10, 0x%08x, v10" % eps)
    e("v_rsq_f32 v10, v10")
    e("s_nop 0")
    e("v_mul_f32 v12, v10, v7")
    e("v_mul_f32 v13, v11, v12")
    e("v_sub_f32 v13, v8, v13")
    e("v_lshlrev_b32 v5, 3, v0")
    e("ds_write_b64 v5, v[12:13]")
    lab("L_n_skip")
    e("s_mov_b64 exec, s[48:49]")
    e("s_waitcnt lgkmcnt(0)")
    e("s_barrier")
    e("v_and_b32 v4, 7, v0")
    e("v_lshlrev_b32 v4, 6, v4")
    for q in range(4):
        e("ds_read_b128 v[%d:%d], v4 offset:%d" % (16 + 4 * q, 19 + 4 * q, 16 * q))
    e("s_waitcnt vmcnt(0) lgkmcnt(0)")
    c1 = struct.unpack("<I", struct.pack("<f", 0.044715))[0]
    import math
    c2 = struct.unpack("<I", struct.pack("<f", -2.0 * math.sqrt(2.0 / math.pi) * math.log2(math.e)))[0]
    e("s_mov_b32 s37, 0x%08x" % c1)
    e("s_mov_b32 s38, 0x%08x" % c2)
    for p in range(4):
        for k in range(8):
            src = 32 + 4 * p + k // 2
            if k % 2 == 0:
                e("v_lshlrev_b32 v48, 16, v%d" % src)
            else:
                e("v_and_b32 v48, 0xffff0000, v%d" % src)
            sc = 16 + 2 * k
            sh = 17 + 2 * k
            e("v_fma_f32 v48, v48, v%d, v%d" % (sc, sh))
            e("v_mul_f32 v49, v48, v48")
            e("v_fma_f32 v49, v49, s37, 1.0")
            e("v_mul_f32 v49, v49, v48")
            e("v_mul_f32 v49, s38, v49")
            e("v_exp_f32 v49, v49")
            e("s_nop 0")
            e("v_add_f32 v49, 1.0, v49")
            e("v_rcp_f32 v49, v49")
            e("s_nop 0")
            e("v_mul_f32 v%d, v48, v49" % (50 + k))
        for k in range(4):
            e("v_cvt_pk_bf16_f32 v%d, v%d, v%d" % (60 + k, 50 + 2 * k, 51 + 2 * k))
        e("v_add_u32 v5, %d, v2" % (32 * p))
        e("v_cmp_gt_u32 vcc, s43, v5")
        e("s_and_saveexec_b64 s[48:49], vcc")
        e("s_mov_b32 s36, %d" % (32768 * p))
        e("buffer_store_dwordx4 v[60:63], v3, s[24:27], s36 offen")
        e("s_mov_b64 exec, s[48:49]")
        e("s_nop 1")
    lab("L_n_done")
    e("s_endpgm")


def kd(name, vgpr):
    return """.amdhsa_kernel %s
  .amdhsa_next_free_vgpr %d
  .amdhsa_next_free_sgpr 102
  .amdhsa_accum_offset %d
  .amdhsa_group_segment_fixed_size 0
  .amdhsa_kernarg_size 64
  .amdhsa_user_sgpr_count 2
  .amdhsa_user_sgpr_kernarg_segment_ptr 1
  .amdhsa_system_sgpr_workgroup_id_x 1
.end_amdhsa_kernel
""" % (name, vgpr, vgpr)

txt = HEADER
txt += "; @launch kernel=conv_gemm_kernel grid=(256,1,1) block=(256,1,1) lds=%d\n" % (NB*8192 + NX*XST)
txt += "; @launch kernel=norm_gelu_kernel grid=(256,1,1) block=(256,1,1) lds=512\n"
txt += '.amdgcn_target "amdgcn-amd-amdhsa--gfx950"\n.text\n'
for name, fn in (("conv_gemm_kernel", gemm_kernel), ("norm_gelu_kernel", norm_kernel)):
    out.clear()
    fn()
    txt += ".globl %s\n.p2align 8\n.type %s,@function\n" % (name, name)
    txt += "\n".join(x for x in out if x is not None) + "\n"
txt += '.section .rodata,"a"\n.p2align 6\n'
txt += kd("conv_gemm_kernel", 256)
txt += ".p2align 6\n"
txt += kd("norm_gelu_kernel", 128)
open(sys.argv[1] if len(sys.argv) > 1 else "standalone__self_sup_conv_stem_hubert__speech.s", "w").write(txt)
```
